```python
import torch

def _softmax(x, axis=-1):
    return torch.softmax(x, dim=axis)
def _gelu(x):
    return torch.nn.functional.gelu(x, approximate="tanh")
def _silu(x):
    return torch.nn.functional.silu(x)
def _sigmoid(x):
    return torch.sigmoid(x)
def _layernorm(x, axis=-1, eps=1e-5):
    m = x.mean(dim=axis, keepdim=True)
    v = x.var(dim=axis, keepdim=True, unbiased=False)
    return (x - m) / torch.sqrt(v + eps)
def _scatter_add(tgt, idx, src, axis=0):
    return tgt.clone().index_add_(axis, idx, src)
def _segment_sum(src, seg, n):
    out = torch.zeros((n,) + src.shape[1:], dtype=src.dtype)
    return out.index_add_(0, seg, src)
def _pad(x, pw):
    flat = tuple(v for pair in reversed(pw) for v in pair)
    return torch.nn.functional.pad(x, flat)

kernel_name = 'standalone__dcn_v2_cross__recsys'

def setup_inputs():

    _w = (lambda a: (lambda t: t.to(torch.bfloat16) if t.is_floating_point() else t)(torch.as_tensor(a)))
    B, F, D, L = 1024, 100, 64, 3
    Din = min(F * D, 1024)
    return {
        "x0": _w((lambda *s: torch.randn(*s, dtype=torch.bfloat16) * 0.05)(B, Din)),
        "ws": _w((lambda *s: torch.randn(*s, dtype=torch.bfloat16) * 0.05)(L, Din, Din)),
        "bs": _w((lambda *s: torch.randn(*s, dtype=torch.bfloat16) * 0.05)(L, Din)),
    }

def reference(x0, ws, bs):
    x = x0
    for l in range(ws.shape[0]):
        x = x0 * (x @ ws[l] + bs[l]) + x
    return x
```

```python
KNAME = "standalone__dcn_v2_cross__recsys_kernel"

HEADER = """; Kernarg layout for this problem (48 bytes, ptrs only, base s[0:1]):
"""

class Asm:
    def __init__(self):
        self.lines = []
        self.nlab = 0
    def __call__(self, s):
        for l in s.split("\n"):
            l = l.rstrip()
            if l.strip() == "": continue
            t = l.strip()
            if t.endswith(":") or t.startswith("."):
                self.lines.append(t)
            else:
                self.lines.append("    " + t)
    def label(self, base="L"):
        self.nlab += 1
        return f"{base}_{self.nlab}"
    def text(self):
        return "\n".join(self.lines) + "\n"

def kernel_desc(name, vgpr, sgpr, accum):
    return f""".amdhsa_kernel {name}
  .amdhsa_next_free_vgpr {vgpr}
  .amdhsa_next_free_sgpr {sgpr}
  .amdhsa_accum_offset {accum}
  .amdhsa_group_segment_fixed_size 0
  .amdhsa_kernarg_size 48
  .amdhsa_user_sgpr_count 2
  .amdhsa_user_sgpr_kernarg_segment_ptr 1
  .amdhsa_system_sgpr_workgroup_id_x 1
  .amdhsa_float_denorm_mode_32 3
.end_amdhsa_kernel
"""

def single_kernel(body, grid, block, lds, vgpr=512, sgpr=102, accum=256, name=KNAME):
    s = HEADER
    s += f"; @launch grid=({grid},1,1) block=({block},1,1) lds={lds}\n"
    s += '.amdgcn_target "amdgcn-amd-amdhsa--gfx950"\n.text\n'
    s += f".globl {name}\n.p2align 8\n.type {name},@function\n{name}:\n"
    s += body
    s += '.section .rodata,"a"\n.p2align 6\n'
    s += kernel_desc(name, vgpr, sgpr, accum)
    return s
```

```python
import sys
from asmlib import *

def gen(arr="b"):
    a = Asm()
    names = ["dcn_l0_kernel", "dcn_l1_kernel", "dcn_l2_kernel"]
    ent = []
    for l, n in enumerate(names):
        ent.append(f".globl {n}\n.p2align 8\n.type {n},@function\n{n}:\n    s_mov_b32 s33, {l}\n    s_branch L_body\n")
    a(".p2align 8")
    a("L_body:")
    a("""
    s_cmp_ge_u32 s2, 256
    s_cbranch_scc1 L_end
    s_load_dwordx4 s[4:7], s[0:1], 0
    s_load_dwordx4 s[36:39], s[0:1], 16
    s_load_dwordx2 s[28:29], s[0:1], 40
    v_lshrrev_b32 v1, 6, v0
    v_and_b32 v2, 63, v0
    s_nop 0
    v_readfirstlane_b32 s3, v1
    s_and_b32 s16, s2, 7
    s_lshr_b32 s17, s2, 3
    """)
    if arr == "a":
        a("""s_lshr_b32 s18, s17, 4
        s_lshl_b32 s20, s16, 1
        s_add_u32 s18, s18, s20
        s_and_b32 s19, s17, 15""")
    else:
        a("""s_lshr_b32 s18, s17, 3
        s_lshr_b32 s20, s16, 1
        s_lshl_b32 s20, s20, 2
        s_add_u32 s18, s18, s20
        s_and_b32 s19, s17, 7
        s_and_b32 s20, s16, 1
        s_lshl_b32 s20, s20, 3
        s_add_u32 s19, s19, s20""")
    a("""
    s_lshr_b32 s40, s3, 1
    s_and_b32 s41, s3, 1
    ; lane offsets for DMA: row=i/8, p=i%8
    v_lshrrev_b32 v3, 3, v2
    v_and_b32 v4, 7, v2                ; p
    v_lshrrev_b32 v5, 4, v2            ; i>>4 (0..3)
    v_xor_b32 v6, v4, v5               ; x: c = p ^ (i>>4)   (even j)
    v_lshlrev_b32 v6, 4, v6
    v_lshl_add_u32 v10, v3, 11, v6
    v_xor_b32 v11, 64, v10             ; v11 = odd j
    v_and_b32 v5, 1, v5
    v_lshlrev_b32 v5, 2, v5
    v_xor_b32 v6, v4, v5               ; W: c = p ^ (((i>>4)&1)<<2)
    v_lshlrev_b32 v6, 4, v6
    v_lshl_add_u32 v12, v3, 11, v6
    ; x frag read addrs: m=l%32,h=l/32: m*128 + ((h ^ f(m))*16) ^ (ks*32), + rh*4096 + kh*16384
    v_and_b32 v3, 31, v2               ; m
    v_lshrrev_b32 v4, 5, v2            ; h
    v_bfe_u32 v5, v3, 1, 3             ; f(m)
    v_xor_b32 v6, v4, v5
    v_lshlrev_b32 v6, 4, v6
    v_lshl_add_u32 v13, v3, 7, v6
    s_lshl_b32 s20, s41, 12
    s_lshl_b32 s21, s40, 14
    s_add_u32 s20, s20, s21
    v_add_u32 v13, s20, v13            ; ks=0
    v_xor_b32 v14, 32, v13
    v_xor_b32 v15, 64, v13
    v_xor_b32 v16, 96, v13
    ; W frag read addr: g=l/16, r=(l%16)/4, c=l%4 ; row=8h+r ; col bytes=(16*(g&1)+4c)*2 (+64*nb)
    v_bfe_u32 v5, v2, 2, 2             ; r
    v_lshl_add_u32 v6, v4, 3, v5       ; row = 8h + r
    v_and_b32 v7, 3, v2                ; c
    v_lshlrev_b32 v7, 3, v7            ; 4c*2 bytes
    v_bfe_u32 v8, v2, 4, 1             ; g&1
    v_lshl_add_u32 v7, v8, 5, v7       ; + 32*(g&1)
    v_bfe_u32 v8, v5, 1, 1             ; (row>>1)&1
    v_lshlrev_b32 v8, 6, v8
    v_xor_b32 v7, v7, v8
    v_lshl_add_u32 v17, v6, 7, v7
    s_add_u32 s21, s21, 8192
    v_add_u32 v17, s21, v17
    v_xor_b32 v18, 64, v17             ; nb=1
    v_bfe_u32 v5, v3, 1, 3
    s_lshl_b32 s20, s40, 2
    v_xor_b32 v5, s20, v5              ; (4kh) ^ f
    v_lshlrev_b32 v5, 4, v5
    v_lshl_add_u32 v5, v4, 3, v5       ; + h*8
    v_lshl_add_u32 v19, v3, 7, v5
    s_lshl_b32 s20, s41, 12
    v_add_u32 v19, s20, v19            ; g=0 ; g: xor (g*16)
    v_xor_b32 v20, 16, v19
    v_xor_b32 v21, 32, v19
    v_xor_b32 v22, 48, v19
    s_lshl_b32 s20, s19, 7
    s_lshl_b32 s21, s40, 6
    s_add_u32 s20, s20, s21
    s_lshl_b32 s21, s33, 11
    s_add_u32 s20, s20, s21
    v_lshlrev_b32 v23, 3, v4
    v_add_u32 v23, s20, v23
    s_waitcnt lgkmcnt(0)
    s_mov_b32 s44, s4
    s_mov_b32 s45, s5
    s_mov_b32 s46, 0x200000
    s_mov_b32 s47, 0x20000
    s_mov_b32 s12, s6
    s_mov_b32 s13, s7
    s_mov_b32 s14, 0x600000
    s_mov_b32 s15, 0x20000
    s_mov_b32 s48, s36
    s_mov_b32 s49, s37
    s_mov_b32 s50, 0x1800
    s_mov_b32 s51, 0x20000
    s_add_u32 s30, s28, 0x200000
    s_addc_u32 s31, s29, 0
    s_cmp_eq_u32 s33, 0
    s_cselect_b32 s8, s4, s28
    s_cselect_b32 s9, s5, s29
    s_cselect_b32 s24, s28, s30
    s_cselect_b32 s25, s29, s31
    s_cmp_eq_u32 s33, 2
    s_cselect_b32 s8, s30, s8
    s_cselect_b32 s9, s31, s9
    s_cselect_b32 s24, s38, s24
    s_cselect_b32 s25, s39, s25
    s_mov_b32 s10, 0x200000
    s_mov_b32 s11, 0x20000
    s_mov_b32 s26, 0x200000
    s_mov_b32 s27, 0x20000
    s_lshl_b32 s21, s18, 17
    s_lshl_b32 s20, s41, 16
    s_add_u32 s21, s21, s20
    s_lshl_b32 s20, s40, 10
    s_add_u32 s21, s21, s20
    s_lshl_b32 s22, s33, 21
    s_lshl_b32 s20, s40, 20
    s_add_u32 s22, s22, s20
    s_lshl_b32 s20, s41, 16
    s_add_u32 s22, s22, s20
    s_lshl_b32 s20, s19, 7
    s_add_u32 s22, s22, s20
    s_lshl_b32 s23, s40, 14
    s_lshl_b32 s20, s41, 12
    s_add_u32 s23, s23, s20
    s_lshl_b32 s42, s18, 17
    s_lshl_b32 s20, s3, 15
    s_add_u32 s42, s42, s20
    s_lshl_b32 s20, s19, 7
    s_add_u32 s42, s42, s20
    s_lshl_b32 s43, s3, 11
    """)
    EP0 = 131072
    EP1 = EP0 + 8192
    RED = EP1 + 8192
    def stage(c):
        slot = (c % 4) * 32768
        for j in range(4):
            a(f"s_add_u32 m0, s23, {slot + 8192 + j*1024}")
            a(f"s_add_u32 s34, s22, {c*64*2048 + j*8*2048}")
            a(f"buffer_load_dwordx4 v12, s[12:15], s34 offen lds")
            a(f"s_add_u32 m0, s23, {slot + j*1024}")
            a(f"s_add_u32 s34, s21, {c*128 + j*8*2048}")
            a(f"buffer_load_dwordx4 v{10 + (j&1)}, s[8:11], s34 offen lds")
    stage(0)
    for j in range(2):
        a(f"s_add_u32 m0, s43, {EP0 + j*1024}")
        a(f"s_add_u32 s34, s42, {j*8*2048}")
        a(f"buffer_load_dwordx4 v{10 + (j&1)}, s[44:47], s34 offen lds")
        a(f"s_add_u32 m0, s43, {EP1 + j*1024}")
        a(f"s_nop 0")
        a(f"buffer_load_dwordx4 v{10 + (j&1)}, s[8:11], s34 offen lds")
    for g in range(4):
        a(f"buffer_load_dwordx2 v[{24+2*g}:{25+2*g}], v23, s[48:51], 0 offen offset:{16*g}")
    stage(1); stage(2)
    for r in range(64, 96):
        a(f"v_mov_b32 v{r}, 0")
    for r in range(6):
        a(f"v_add_u32 v{150+r}, 0x10000, v{13+r}")
    XF = 100; WF = 116
    for c in range(8):
        later = min(c+2, 7) - c
        a(f"s_waitcnt vmcnt({8*later})") if c > 0 else a(f"s_waitcnt vmcnt({8*later + 8})")
        a("s_barrier")
        slot = (c % 2) * 32768
        ab = 13 if (c % 4) < 2 else 150
        for ks in range(4):
            a(f"ds_read_b128 v[{XF+4*ks}:{XF+4*ks+3}], v{ab+ks} offset:{slot}")
            for nb in range(2):
                r = WF + (ks*2+nb)*4
                a(f"ds_read_b64_tr_b16 v[{r}:{r+1}], v{ab+4+nb} offset:{slot + ks*2048}")
                a(f"ds_read_b64_tr_b16 v[{r+2}:{r+3}], v{ab+4+nb} offset:{slot + ks*2048 + 512}")
        if c + 3 <= 7:
            stage(c+3)
        for ks in range(4):
            a(f"s_waitcnt lgkmcnt({5*(3-ks)})")
            for nb in range(2):
                r = WF + (ks*2+nb)*4
                a(f"v_mfma_f32_32x32x16_bf16 v[{64+16*nb}:{79+16*nb}], v[{r}:{r+3}], v[{XF+4*ks}:{XF+4*ks+3}], v[{64+16*nb}:{79+16*nb}]")
    a("v_add_u32 v19, 0x20000, v19\nv_add_u32 v20, 0x20000, v20\nv_add_u32 v21, 0x20000, v21\nv_add_u32 v22, 0x20000, v22")
    for g in range(4):
        a(f"ds_read_b64 v[{32+2*g}:{33+2*g}], v{19+g}")
        a(f"ds_read_b64 v[{40+2*g}:{41+2*g}], v{19+g} offset:8192")
    a(f"""
    v_lshlrev_b32 v48, 4, v2
    s_lshl_b32 s20, s41, 13
    s_lshl_b32 s34, s40, 12
    s_add_u32 s20, s20, s34
    s_add_u32 s20, s20, {RED}
    v_add_u32 v49, s20, v48
    v_xor_b32 v48, 0x1000, v49
    s_cmp_eq_u32 s40, 0
    s_cbranch_scc1 L_kh0
    s_nop 7
    """)
    for q in range(4):
        a(f"ds_write_b128 v48, v[{64+4*q}:{67+4*q}] offset:{q*1024}")
    a("s_waitcnt lgkmcnt(0)")
    for r in range(16):
        a(f"v_mov_b32 v{64+r}, v{80+r}")
    a("s_branch L_join")
    a("L_kh0:")
    a("s_nop 7")
    for q in range(4):
        a(f"ds_write_b128 v48, v[{80+4*q}:{83+4*q}] offset:{q*1024}")
    a("s_waitcnt lgkmcnt(0)")
    a("L_join:")
    a("s_barrier")
    for q in range(4):
        a(f"ds_read_b128 v[{80+4*q}:{83+4*q}], v49 offset:{q*1024}")
    a("s_waitcnt lgkmcnt(0)")
    for g in range(4):
        for i in range(4):
            r = 4*g + i
            src = 24 + 2*g + (i >> 1)
            def unpack(dst, s):
                if i & 1: a(f"v_and_b32 v{dst}, 0xffff0000, v{s}")
                else: a(f"v_lshlrev_b32 v{dst}, 16, v{s}")
            unpack(50, src)
            unpack(51, 32 + 2*g + (i >> 1))
            unpack(52, 40 + 2*g + (i >> 1))
            a(f"v_add_f32 v{64+r}, v{64+r}, v{80+r}")
            a(f"v_add_f32 v{64+r}, v{64+r}, v50")
            a(f"v_fma_f32 v{64+r}, v{64+r}, v51, v52")
        a(f"v_cvt_pk_bf16_f32 v{56+2*g}, v{64+4*g}, v{65+4*g}")
        a(f"v_cvt_pk_bf16_f32 v{57+2*g}, v{66+4*g}, v{67+4*g}")
    for g in range(4):
        a(f"ds_write_b64 v{19+g}, v[{56+2*g}:{57+2*g}]")
    a("s_waitcnt lgkmcnt(0)")
    a("s_barrier")
    a(f"""v_lshlrev_b32 v48, 4, v2
    v_add_u32 v48, s43, v48
    v_add_u32 v48, {EP0}, v48
    ds_read_b128 v[64:67], v48
    ds_read_b128 v[68:71], v48 offset:1024
    s_add_u32 s34, s42, {8*2048}
    s_waitcnt lgkmcnt(1)
    buffer_store_dwordx4 v[64:67], v10, s[24:27], s42 offen
    s_waitcnt lgkmcnt(0)
    buffer_store_dwordx4 v[68:71], v11, s[24:27], s34 offen
    L_end:
    s_endpgm""")
    body = a.text()
    s = HEADER
    for n in names:
        s += f"; @launch kernel={n} grid=(256,1,1) block=(256,1,1) lds=163840\n"
    s += '.amdgcn_target "amdgcn-amd-amdhsa--gfx950"\n.text\n'
    s += "".join(ent) + body
    s += '.section .rodata,"a"\n'
    for n in names:
        s += ".p2align 6\n" + kernel_desc(n, 160, 64, 160)
    return s

if __name__ == "__main__":
    open("v1.s", "w").write(gen())
```

```python
import sys
from asmlib import *

def gen(arr="b", sc="sc1", stamps=False):
    a = Asm()
    names = ["dcn_l0_kernel", "dcn_l1_kernel", "dcn_l2_kernel"]
    ent = []
    for l, n in enumerate(names):
        ent.append(f".globl {n}\n.p2align 8\n.type {n},@function\n{n}:\n    s_mov_b32 s33, {l}\n    s_branch L_body\n")
    a("s_mov_b32 s33, 0")
    a("""
    s_cmp_ge_u32 s2, 256
    s_cbranch_scc1 L_end
    s_load_dwordx4 s[4:7], s[0:1], 0
    s_load_dwordx4 s[36:39], s[0:1], 16
    s_load_dwordx4 s[52:55], s[0:1], 32
    s_memrealtime s[60:61]
    v_lshrrev_b32 v1, 6, v0
    v_and_b32 v2, 63, v0
    s_nop 0
    v_readfirstlane_b32 s3, v1
    s_and_b32 s16, s2, 7
    s_lshr_b32 s17, s2, 3
    """)
    if arr == "a":
        a("""s_lshr_b32 s18, s17, 4
        s_lshl_b32 s20, s16, 1
        s_add_u32 s18, s18, s20
        s_and_b32 s19, s17, 15""")
    else:
        a("""s_lshr_b32 s18, s17, 3
        s_lshr_b32 s20, s16, 1
        s_lshl_b32 s20, s20, 2
        s_add_u32 s18, s18, s20
        s_and_b32 s19, s17, 7
        s_and_b32 s20, s16, 1
        s_lshl_b32 s20, s20, 3
        s_add_u32 s19, s19, s20""")
    a("""
    s_lshr_b32 s40, s3, 1
    s_and_b32 s41, s3, 1
    ; lane offsets for DMA: row=i/8, p=i%8
    v_lshrrev_b32 v3, 3, v2
    v_and_b32 v4, 7, v2                ; p
    v_lshrrev_b32 v5, 4, v2            ; i>>4 (0..3)
    v_xor_b32 v6, v4, v5               ; x: c = p ^ (i>>4)   (even j)
    v_lshlrev_b32 v6, 4, v6
    v_lshl_add_u32 v10, v3, 11, v6
    v_xor_b32 v11, 64, v10             ; v11 = odd j
    v_and_b32 v5, 1, v5
    v_lshlrev_b32 v5, 2, v5
    v_xor_b32 v6, v4, v5               ; W: c = p ^ (((i>>4)&1)<<2)
    v_lshlrev_b32 v6, 4, v6
    v_lshl_add_u32 v12, v3, 11, v6
    ; x frag read addrs: m=l%32,h=l/32: m*128 + ((h ^ f(m))*16) ^ (ks*32), + rh*4096 + kh*16384
    v_and_b32 v3, 31, v2               ; m
    v_lshrrev_b32 v4, 5, v2            ; h
    v_bfe_u32 v5, v3, 1, 3             ; f(m)
    v_xor_b32 v6, v4, v5
    v_lshlrev_b32 v6, 4, v6
    v_lshl_add_u32 v13, v3, 7, v6
    s_lshl_b32 s20, s41, 12
    s_lshl_b32 s21, s40, 14
    s_add_u32 s20, s20, s21
    v_add_u32 v13, s20, v13            ; ks=0
    v_xor_b32 v14, 32, v13
    v_xor_b32 v15, 64, v13
    v_xor_b32 v16, 96, v13
    ; W frag read addr: g=l/16, r=(l%16)/4, c=l%4 ; row=8h+r ; col bytes=(16*(g&1)+4c)*2 (+64*nb)
    v_bfe_u32 v5, v2, 2, 2             ; r
    v_lshl_add_u32 v6, v4, 3, v5       ; row = 8h + r
    v_and_b32 v7, 3, v2                ; c
    v_lshlrev_b32 v7, 3, v7            ; 4c*2 bytes
    v_bfe_u32 v8, v2, 4, 1             ; g&1
    v_lshl_add_u32 v7, v8, 5, v7       ; + 32*(g&1)
    v_bfe_u32 v8, v5, 1, 1             ; (row>>1)&1
    v_lshlrev_b32 v8, 6, v8
    v_xor_b32 v7, v7, v8
    v_lshl_add_u32 v17, v6, 7, v7
    s_add_u32 s21, s21, 8192
    v_add_u32 v17, s21, v17
    v_xor_b32 v18, 64, v17             ; nb=1
    v_bfe_u32 v5, v3, 1, 3
    s_lshl_b32 s20, s40, 2
    v_xor_b32 v5, s20, v5              ; (4kh) ^ f
    v_lshlrev_b32 v5, 4, v5
    v_lshl_add_u32 v5, v4, 3, v5       ; + h*8
    v_lshl_add_u32 v19, v3, 7, v5
    s_lshl_b32 s20, s41, 12
    v_add_u32 v19, s20, v19            ; g=0 ; g: xor (g*16)
    v_xor_b32 v20, 16, v19
    v_xor_b32 v21, 32, v19
    v_xor_b32 v22, 48, v19
    s_waitcnt lgkmcnt(0)
    s_mov_b32 s28, s54
    s_mov_b32 s29, s55
    s_mov_b32 s56, s52
    s_mov_b32 s57, s53
    s_mov_b32 s58, 256
    s_mov_b32 s59, 0x20000
    L_layer:
    s_lshl_b32 s20, s19, 7
    s_lshl_b32 s21, s40, 6
    s_add_u32 s20, s20, s21
    s_lshl_b32 s21, s33, 11
    s_add_u32 s20, s20, s21
    v_lshlrev_b32 v23, 3, v4
    v_add_u32 v23, s20, v23
    s_waitcnt lgkmcnt(0)
    s_mov_b32 s44, s4
    s_mov_b32 s45, s5
    s_mov_b32 s46, 0x200000
    s_mov_b32 s47, 0x20000
    s_mov_b32 s12, s6
    s_mov_b32 s13, s7
    s_mov_b32 s14, 0x600000
    s_mov_b32 s15, 0x20000
    s_mov_b32 s48, s36
    s_mov_b32 s49, s37
    s_mov_b32 s50, 0x1800
    s_mov_b32 s51, 0x20000
    s_add_u32 s30, s28, 0x200000
    s_addc_u32 s31, s29, 0
    s_cmp_eq_u32 s33, 0
    s_cselect_b32 s8, s4, s28
    s_cselect_b32 s9, s5, s29
    s_cselect_b32 s24, s28, s30
    s_cselect_b32 s25, s29, s31
    s_cmp_eq_u32 s33, 2
    s_cselect_b32 s8, s30, s8
    s_cselect_b32 s9, s31, s9
    s_cselect_b32 s24, s38, s24
    s_cselect_b32 s25, s39, s25
    s_mov_b32 s10, 0x200000
    s_mov_b32 s11, 0x20000
    s_mov_b32 s26, 0x200000
    s_mov_b32 s27, 0x20000
    s_lshl_b32 s21, s18, 17
    s_lshl_b32 s20, s41, 16
    s_add_u32 s21, s21, s20
    s_lshl_b32 s20, s40, 10
    s_add_u32 s21, s21, s20
    s_lshl_b32 s22, s33, 21
    s_lshl_b32 s20, s40, 20
    s_add_u32 s22, s22, s20
    s_lshl_b32 s20, s41, 16
    s_add_u32 s22, s22, s20
    s_lshl_b32 s20, s19, 7
    s_add_u32 s22, s22, s20
    s_lshl_b32 s23, s40, 14
    s_lshl_b32 s20, s41, 12
    s_add_u32 s23, s23, s20
    s_lshl_b32 s42, s18, 17
    s_lshl_b32 s20, s3, 15
    s_add_u32 s42, s42, s20
    s_lshl_b32 s20, s19, 7
    s_add_u32 s42, s42, s20
    s_lshl_b32 s43, s3, 11
    """)
    st = [0]
    def stamp():
        if not stamps: return
        i = st[0]; st[0] += 1
        a(f"s_memtime s[{64+2*i}:{65+2*i}]")
    stamp()
    EP0 = 131072
    EP1 = EP0 + 8192
    RED = EP1 + 8192
    def stage(c):
        slot = (c % 4) * 32768
        for j in range(4):
            a(f"s_add_u32 m0, s23, {slot + 8192 + j*1024}")
            a(f"s_add_u32 s34, s22, {c*64*2048 + j*8*2048}")
            a(f"buffer_load_dwordx4 v12, s[12:15], s34 offen lds")
            a(f"s_add_u32 m0, s23, {slot + j*1024}")
            a(f"s_add_u32 s34, s21, {c*128 + j*8*2048}")
            a(f"buffer_load_dwordx4 v{10 + (j&1)}, s[8:11], s34 offen {sc} lds")
    stage(0)
    for j in range(2):
        a(f"s_add_u32 m0, s43, {EP0 + j*1024}")
        a(f"s_add_u32 s34, s42, {j*8*2048}")
        a(f"buffer_load_dwordx4 v{10 + (j&1)}, s[44:47], s34 offen lds")
        a(f"s_add_u32 m0, s43, {EP1 + j*1024}")
        a(f"s_nop 0")
        a(f"buffer_load_dwordx4 v{10 + (j&1)}, s[8:11], s34 offen {sc} lds")
    for g in range(4):
        a(f"buffer_load_dwordx2 v[{24+2*g}:{25+2*g}], v23, s[48:51], 0 offen offset:{16*g}")
    stage(1); stage(2)
    for r in range(64, 96):
        a(f"v_mov_b32 v{r}, 0")
    for r in range(6):
        a(f"v_add_u32 v{150+r}, 0x10000, v{13+r}")
    XF = 100; WF = 116
    for c in range(8):
        later = min(c+2, 7) - c
        a(f"s_waitcnt vmcnt({8*later})") if c > 0 else a(f"s_waitcnt vmcnt({8*later + 8})")
        a("s_barrier")
        if c in (0, 1, 4, 7): stamp()
        slot = (c % 2) * 32768
        ab = 13 if (c % 4) < 2 else 150
        for ks in range(4):
            a(f"ds_read_b128 v[{XF+4*ks}:{XF+4*ks+3}], v{ab+ks} offset:{slot}")
            for nb in range(2):
                r = WF + (ks*2+nb)*4
                a(f"ds_read_b64_tr_b16 v[{r}:{r+1}], v{ab+4+nb} offset:{slot + ks*2048}")
                a(f"ds_read_b64_tr_b16 v[{r+2}:{r+3}], v{ab+4+nb} offset:{slot + ks*2048 + 512}")
        if c + 3 <= 7:
            stage(c+3)
        for ks in range(4):
            a(f"s_waitcnt lgkmcnt({5*(3-ks)})")
            for nb in range(2):
                r = WF + (ks*2+nb)*4
                a(f"v_mfma_f32_32x32x16_bf16 v[{64+16*nb}:{79+16*nb}], v[{r}:{r+3}], v[{XF+4*ks}:{XF+4*ks+3}], v[{64+16*nb}:{79+16*nb}]")
    stamp()
    a("v_add_u32 v19, 0x20000, v19\nv_add_u32 v20, 0x20000, v20\nv_add_u32 v21, 0x20000, v21\nv_add_u32 v22, 0x20000, v22")
    for g in range(4):
        a(f"ds_read_b64 v[{32+2*g}:{33+2*g}], v{19+g}")
        a(f"ds_read_b64 v[{40+2*g}:{41+2*g}], v{19+g} offset:8192")
    a(f"""
    v_lshlrev_b32 v48, 4, v2
    s_lshl_b32 s20, s41, 13
    s_lshl_b32 s34, s40, 12
    s_add_u32 s20, s20, s34
    s_add_u32 s20, s20, {RED}
    v_add_u32 v49, s20, v48
    v_xor_b32 v48, 0x1000, v49
    s_cmp_eq_u32 s40, 0
    s_cbranch_scc1 L_kh0
    s_nop 7
    """)
    for q in range(4):
        a(f"ds_write_b128 v48, v[{64+4*q}:{67+4*q}] offset:{q*1024}")
    a("s_waitcnt lgkmcnt(0)")
    for r in range(16):
        a(f"v_mov_b32 v{64+r}, v{80+r}")
    a("s_branch L_join")
    a("L_kh0:")
    a("s_nop 7")
    for q in range(4):
        a(f"ds_write_b128 v48, v[{80+4*q}:{83+4*q}] offset:{q*1024}")
    a("s_waitcnt lgkmcnt(0)")
    a("L_join:")
    a("s_barrier")
    for q in range(4):
        a(f"ds_read_b128 v[{80+4*q}:{83+4*q}], v49 offset:{q*1024}")
    a("s_waitcnt lgkmcnt(0)")
    stamp()
    for g in range(4):
        for i in range(4):
            r = 4*g + i
            src = 24 + 2*g + (i >> 1)
            def unpack(dst, s):
                if i & 1: a(f"v_and_b32 v{dst}, 0xffff0000, v{s}")
                else: a(f"v_lshlrev_b32 v{dst}, 16, v{s}")
            unpack(50, src)
            unpack(51, 32 + 2*g + (i >> 1))
            unpack(52, 40 + 2*g + (i >> 1))
            a(f"v_add_f32 v{64+r}, v{64+r}, v{80+r}")
            a(f"v_add_f32 v{64+r}, v{64+r}, v50")
            a(f"v_fma_f32 v{64+r}, v{64+r}, v51, v52")
        a(f"v_cvt_pk_bf16_f32 v{56+2*g}, v{64+4*g}, v{65+4*g}")
        a(f"v_cvt_pk_bf16_f32 v{57+2*g}, v{66+4*g}, v{67+4*g}")
    for g in range(4):
        a(f"ds_write_b64 v{19+g}, v[{56+2*g}:{57+2*g}]")
    a("s_waitcnt lgkmcnt(0)")
    a("s_barrier")
    stamp()
    a("v_add_u32 v19, 0xfffe0000, v19\nv_add_u32 v20, 0xfffe0000, v20\nv_add_u32 v21, 0xfffe0000, v21\nv_add_u32 v22, 0xfffe0000, v22")
    a(f"""v_lshlrev_b32 v48, 4, v2
    v_add_u32 v48, s43, v48
    v_add_u32 v48, {EP0}, v48
    ds_read_b128 v[64:67], v48
    ds_read_b128 v[68:71], v48 offset:1024
    s_add_u32 s34, s42, {8*2048}
    s_waitcnt lgkmcnt(1)
    buffer_store_dwordx4 v[64:67], v10, s[24:27], s42 offen {sc}
    s_waitcnt lgkmcnt(0)
    buffer_store_dwordx4 v[68:71], v11, s[24:27], s34 offen {sc}
    s_waitcnt vmcnt(0)
    """)
    stamp()
    a(f"""
    s_cmp_eq_u32 s33, 2
    s_cbranch_scc1 L_wait2
    s_barrier
    s_lshl_b32 s34, s33, 4
    s_add_u32 s34, s34, s18
    s_lshl_b32 s34, s34, 2
    v_mov_b32 v48, 0
    v_mov_b32 v49, 1
    s_cmp_lg_u32 s3, 0
    s_cbranch_scc1 L_wait
    s_mov_b64 exec, 1
    buffer_atomic_add v49, v48, s[56:59], s34 offen sc1
    s_mov_b32 s62, 0
    L_poll:
    buffer_load_dword v50, v48, s[56:59], s34 offen sc1
    s_add_u32 s62, s62, 1
    s_cmp_gt_u32 s62, 200000
    s_cbranch_scc1 L_pollx
    s_waitcnt vmcnt(0)
    v_readfirstlane_b32 s35, v50
    s_cmp_lt_u32 s35, 16
    s_cbranch_scc1 L_poll
    L_pollx:
    s_mov_b64 exec, -1
    L_wait:
    s_barrier
    L_wait2:
    """)
    stamp()
    if stamps:
        a("""s_waitcnt lgkmcnt(0)
        s_lshl_b32 s34, s2, 2
        s_add_u32 s34, s34, s3
        s_lshl_b32 s34, s34, 8
        s_lshl_b32 s35, s33, 6
        s_add_u32 s34, s34, s35
        s_add_u32 s34, s34, 0x800000
        s_mov_b32 s96, s28
        s_mov_b32 s97, s29
        s_mov_b32 s98, 0x10000000
        s_mov_b32 s99, 0x20000
        v_mov_b32 v48, 0""")
        for i in range(12):
            a(f"v_mov_b32 v{64+i}, s{64+2*min(i, st[0]-1)}")
        a("""v_mov_b32 v76, s60
        s_mov_b64 exec, 1
        buffer_store_dwordx4 v[64:67], v48, s[96:99], s34 offen
        buffer_store_dwordx4 v[68:71], v48, s[96:99], s34 offen offset:16
        buffer_store_dwordx4 v[72:75], v48, s[96:99], s34 offen offset:32
        buffer_store_dword v76, v48, s[96:99], s34 offen offset:48
        s_waitcnt vmcnt(0)
        s_mov_b64 exec, -1""")
    a(f"""
    s_add_u32 s33, s33, 1
    s_cmp_lt_u32 s33, 3
    s_cbranch_scc1 L_layer
    L_end:
    s_endpgm""")
    body = a.text()
    return single_kernel(body, 256, 256, 163840, vgpr=160, sgpr=102, accum=160)

if __name__ == "__main__":
    open("v2_b.s", "w").write(gen("b"))
    open("v2_a.s", "w").write(gen("a"))
    open("v2_b_st.s", "w").write(gen("b", stamps=True))
    open("v2_b_st_nosc.s", "w").write(gen("b", sc="", stamps=True))
```

```python
import sys
from asmlib import *

def gen(arr="b", sc="sc1", stamps=False, probe=None):
    a = Asm()
    names = ["dcn_l0_kernel", "dcn_l1_kernel", "dcn_l2_kernel"]
    ent = []
    for l, n in enumerate(names):
        ent.append(f".globl {n}\n.p2align 8\n.type {n},@function\n{n}:\n    s_mov_b32 s33, {l}\n    s_branch L_body\n")
    a("s_memtime s[90:91]")
    a("s_mov_b32 s33, 0")
    a("""
    s_cmp_ge_u32 s2, 256
    s_cbranch_scc1 L_end
    s_load_dwordx4 s[4:7], s[0:1], 0
    s_load_dwordx4 s[36:39], s[0:1], 16
    s_load_dwordx4 s[52:55], s[0:1], 32
    s_memrealtime s[60:61]
    v_lshrrev_b32 v1, 6, v0
    v_and_b32 v2, 63, v0
    s_nop 0
    v_readfirstlane_b32 s3, v1
    s_and_b32 s16, s2, 7
    s_lshr_b32 s17, s2, 3
    """)
    if arr == "a":
        a("""s_lshr_b32 s18, s17, 4
        s_lshl_b32 s20, s16, 1
        s_add_u32 s18, s18, s20
        s_and_b32 s19, s17, 15""")
    else:
        a("""s_lshr_b32 s18, s17, 3
        s_lshr_b32 s20, s16, 1
        s_lshl_b32 s20, s20, 2
        s_add_u32 s18, s18, s20
        s_and_b32 s19, s17, 7
        s_and_b32 s20, s16, 1
        s_lshl_b32 s20, s20, 3
        s_add_u32 s19, s19, s20""")
    a("""
    s_lshr_b32 s40, s3, 1
    s_and_b32 s41, s3, 1
    ; lane offsets for DMA: row=i/8, p=i%8
    v_lshrrev_b32 v3, 3, v2
    v_and_b32 v4, 7, v2                ; p
    v_lshrrev_b32 v5, 4, v2            ; i>>4 (0..3)
    v_xor_b32 v6, v4, v5               ; x: c = p ^ (i>>4)   (even j)
    v_lshlrev_b32 v6, 4, v6
    v_lshl_add_u32 v10, v3, 11, v6
    v_xor_b32 v11, 64, v10             ; v11 = odd j
    v_and_b32 v5, 1, v5
    v_lshlrev_b32 v5, 2, v5
    v_xor_b32 v6, v4, v5               ; W: c = p ^ (((i>>4)&1)<<2)
    v_lshlrev_b32 v6, 4, v6
    v_lshl_add_u32 v12, v3, 11, v6
    ; x frag read addrs: m=l%32,h=l/32: m*128 + ((h ^ f(m))*16) ^ (ks*32), + rh*4096 + kh*16384
    v_and_b32 v3, 31, v2               ; m
    v_lshrrev_b32 v4, 5, v2            ; h
    v_bfe_u32 v5, v3, 1, 3             ; f(m)
    v_xor_b32 v6, v4, v5
    v_lshlrev_b32 v6, 4, v6
    v_lshl_add_u32 v13, v3, 7, v6
    s_lshl_b32 s20, s41, 12
    s_lshl_b32 s21, s40, 14
    s_add_u32 s20, s20, s21
    v_add_u32 v13, s20, v13            ; ks=0
    v_xor_b32 v14, 32, v13
    v_xor_b32 v15, 64, v13
    v_xor_b32 v16, 96, v13
    ; W frag read addr: g=l/16, r=(l%16)/4, c=l%4 ; row=8h+r ; col bytes=(16*(g&1)+4c)*2 (+64*nb)
    v_bfe_u32 v5, v2, 2, 2             ; r
    v_lshl_add_u32 v6, v4, 3, v5       ; row = 8h + r
    v_and_b32 v7, 3, v2                ; c
    v_lshlrev_b32 v7, 3, v7            ; 4c*2 bytes
    v_bfe_u32 v8, v2, 4, 1             ; g&1
    v_lshl_add_u32 v7, v8, 5, v7       ; + 32*(g&1)
    v_bfe_u32 v8, v5, 1, 1             ; (row>>1)&1
    v_lshlrev_b32 v8, 6, v8
    v_xor_b32 v7, v7, v8
    v_lshl_add_u32 v17, v6, 7, v7
    s_add_u32 s21, s21, 8192
    v_add_u32 v17, s21, v17
    v_xor_b32 v18, 64, v17             ; nb=1
    v_bfe_u32 v5, v3, 1, 3
    s_lshl_b32 s20, s40, 2
    v_xor_b32 v5, s20, v5              ; (4kh) ^ f
    v_lshlrev_b32 v5, 4, v5
    v_lshl_add_u32 v5, v4, 3, v5       ; + h*8
    v_lshl_add_u32 v19, v3, 7, v5
    s_lshl_b32 s20, s41, 12
    v_add_u32 v19, s20, v19            ; g=0 ; g: xor (g*16)
    v_xor_b32 v20, 16, v19
    v_xor_b32 v21, 32, v19
    v_xor_b32 v22, 48, v19
    s_waitcnt lgkmcnt(0)
    s_mov_b32 s28, s54
    s_mov_b32 s29, s55
    s_mov_b32 s56, s52
    s_mov_b32 s57, s53
    s_mov_b32 s58, 256
    s_mov_b32 s59, 0x20000
    L_layer:
    s_lshl_b32 s20, s19, 7
    s_lshl_b32 s21, s40, 6
    s_add_u32 s20, s20, s21
    s_lshl_b32 s21, s33, 11
    s_add_u32 s20, s20, s21
    v_lshlrev_b32 v23, 3, v4
    v_add_u32 v23, s20, v23
    s_waitcnt lgkmcnt(0)
    s_mov_b32 s44, s4
    s_mov_b32 s45, s5
    s_mov_b32 s46, 0x200000
    s_mov_b32 s47, 0x20000
    s_mov_b32 s12, s6
    s_mov_b32 s13, s7
    s_mov_b32 s14, 0x600000
    s_mov_b32 s15, 0x20000
    s_mov_b32 s48, s36
    s_mov_b32 s49, s37
    s_mov_b32 s50, 0x1800
    s_mov_b32 s51, 0x20000
    s_add_u32 s30, s28, 0x200000
    s_addc_u32 s31, s29, 0
    s_cmp_eq_u32 s33, 0
    s_cselect_b32 s8, s4, s28
    s_cselect_b32 s9, s5, s29
    s_cselect_b32 s24, s28, s30
    s_cselect_b32 s25, s29, s31
    s_cmp_eq_u32 s33, 2
    s_cselect_b32 s8, s30, s8
    s_cselect_b32 s9, s31, s9
    s_cselect_b32 s24, s38, s24
    s_cselect_b32 s25, s39, s25
    s_mov_b32 s10, 0x200000
    s_mov_b32 s11, 0x20000
    s_mov_b32 s26, 0x200000
    s_mov_b32 s27, 0x20000
    s_lshl_b32 s21, s18, 17
    s_lshl_b32 s20, s41, 16
    s_add_u32 s21, s21, s20
    s_lshl_b32 s20, s40, 10
    s_add_u32 s21, s21, s20
    s_lshl_b32 s22, s33, 21
    s_lshl_b32 s20, s40, 20
    s_add_u32 s22, s22, s20
    s_lshl_b32 s20, s41, 16
    s_add_u32 s22, s22, s20
    s_lshl_b32 s20, s19, 7
    s_add_u32 s22, s22, s20
    s_lshl_b32 s23, s40, 14
    s_lshl_b32 s20, s41, 12
    s_add_u32 s23, s23, s20
    s_lshl_b32 s42, s18, 17
    s_lshl_b32 s20, s3, 15
    s_add_u32 s42, s42, s20
    s_lshl_b32 s20, s19, 7
    s_add_u32 s42, s42, s20
    s_lshl_b32 s43, s3, 11
    """)
    st = [0]
    def stamp():
        if not stamps: return
        i = st[0]; st[0] += 1
        a(f"s_memtime s[{64+2*i}:{65+2*i}]")
    stamp()
    EP0 = 131072
    EP1 = EP0 + 8192
    RED = EP1 + 8192
    def stage(c):
        slot = (c % 4) * 32768
        for j in range(4):
            a(f"s_add_u32 m0, s23, {slot + 8192 + j*1024}")
            a(f"s_add_u32 s34, s22, {c*64*2048 + j*8*2048}")
            a(f"buffer_load_dwordx4 v12, s[12:15], s34 offen lds")
            a(f"s_add_u32 m0, s23, {slot + j*1024}")
            a(f"s_add_u32 s34, s21, {c*128 + j*8*2048}")
            a(f"buffer_load_dwordx4 v{10 + (j&1)}, s[8:11], s34 offen {sc} lds")
    stage(0)
    for j in range(2):
        a(f"s_add_u32 m0, s43, {EP0 + j*1024}")
        a(f"s_add_u32 s34, s42, {j*8*2048}")
        a(f"buffer_load_dwordx4 v{10 + (j&1)}, s[44:47], s34 offen lds")
        a(f"s_add_u32 m0, s43, {EP1 + j*1024}")
        a(f"s_nop 0")
        a(f"buffer_load_dwordx4 v{10 + (j&1)}, s[8:11], s34 offen {sc} lds")
    for g in range(4):
        a(f"buffer_load_dwordx2 v[{24+2*g}:{25+2*g}], v23, s[48:51], 0 offen offset:{16*g}")
    stage(1); stage(2)
    for r in range(64, 96):
        a(f"v_mov_b32 v{r}, 0")
    for r in range(6):
        a(f"v_add_u32 v{150+r}, 0x10000, v{13+r}")
    XF = 100; WF = 116
    for c in range(8):
        later = min(c+2, 7) - c
        a(f"s_waitcnt vmcnt({8*later})") if c > 0 else a(f"s_waitcnt vmcnt({8*later + 8})")
        a("s_barrier")
        if c in (0, 1, 4, 7): stamp()
        if probe == "first" and c == 0:
            a("s_cmp_lg_u32 s33, 0\ns_cbranch_scc1 L_np\ns_memtime s[92:93]\nL_np:")
        if probe == "l0" and c == 7:
            a("s_cmp_lg_u32 s33, 0\ns_cbranch_scc1 L_np\ns_memtime s[92:93]\nL_np:")
        slot = (c % 2) * 32768
        ab = 13 if (c % 4) < 2 else 150
        for ks in range(4):
            a(f"ds_read_b128 v[{XF+4*ks}:{XF+4*ks+3}], v{ab+ks} offset:{slot}")
            for nb in range(2):
                r = WF + (ks*2+nb)*4
                a(f"ds_read_b64_tr_b16 v[{r}:{r+1}], v{ab+4+nb} offset:{slot + ks*2048}")
                a(f"ds_read_b64_tr_b16 v[{r+2}:{r+3}], v{ab+4+nb} offset:{slot + ks*2048 + 512}")
        if c + 3 <= 7:
            stage(c+3)
        for ks in range(4):
            a(f"s_waitcnt lgkmcnt({5*(3-ks)})")
            for nb in range(2):
                r = WF + (ks*2+nb)*4
                a(f"v_mfma_f32_32x32x16_bf16 v[{64+16*nb}:{79+16*nb}], v[{r}:{r+3}], v[{XF+4*ks}:{XF+4*ks+3}], v[{64+16*nb}:{79+16*nb}]")
    stamp()
    a("v_add_u32 v19, 0x20000, v19\nv_add_u32 v20, 0x20000, v20\nv_add_u32 v21, 0x20000, v21\nv_add_u32 v22, 0x20000, v22")
    for g in range(4):
        a(f"ds_read_b64 v[{32+2*g}:{33+2*g}], v{19+g}")
        a(f"ds_read_b64 v[{40+2*g}:{41+2*g}], v{19+g} offset:8192")
    a(f"""
    v_lshlrev_b32 v48, 4, v2
    s_lshl_b32 s20, s41, 13
    s_lshl_b32 s34, s40, 12
    s_add_u32 s20, s20, s34
    s_add_u32 s20, s20, {RED}
    v_add_u32 v49, s20, v48
    v_xor_b32 v48, 0x1000, v49
    s_cmp_eq_u32 s40, 0
    s_cbranch_scc1 L_kh0
    s_nop 7
    """)
    for q in range(4):
        a(f"ds_write_b128 v48, v[{64+4*q}:{67+4*q}] offset:{q*1024}")
    a("s_waitcnt lgkmcnt(0)")
    for r in range(16):
        a(f"v_mov_b32 v{64+r}, v{80+r}")
    a("s_branch L_join")
    a("L_kh0:")
    a("s_nop 7")
    for q in range(4):
        a(f"ds_write_b128 v48, v[{80+4*q}:{83+4*q}] offset:{q*1024}")
    a("s_waitcnt lgkmcnt(0)")
    a("L_join:")
    a("s_barrier")
    for q in range(4):
        a(f"ds_read_b128 v[{80+4*q}:{83+4*q}], v49 offset:{q*1024}")
    a("s_waitcnt lgkmcnt(0)")
    stamp()
    for g in range(4):
        for i in range(4):
            r = 4*g + i
            src = 24 + 2*g + (i >> 1)
            def unpack(dst, s):
                if i & 1: a(f"v_and_b32 v{dst}, 0xffff0000, v{s}")
                else: a(f"v_lshlrev_b32 v{dst}, 16, v{s}")
            unpack(50, src)
            unpack(51, 32 + 2*g + (i >> 1))
            unpack(52, 40 + 2*g + (i >> 1))
            a(f"v_add_f32 v{64+r}, v{64+r}, v{80+r}")
            a(f"v_add_f32 v{64+r}, v{64+r}, v50")
            a(f"v_fma_f32 v{64+r}, v{64+r}, v51, v52")
        a(f"v_cvt_pk_bf16_f32 v{56+2*g}, v{64+4*g}, v{65+4*g}")
        a(f"v_cvt_pk_bf16_f32 v{57+2*g}, v{66+4*g}, v{67+4*g}")
    for g in range(4):
        a(f"ds_write_b64 v{19+g}, v[{56+2*g}:{57+2*g}]")
    a("s_waitcnt lgkmcnt(0)")
    a("s_barrier")
    stamp()
    a("v_add_u32 v19, 0xfffe0000, v19\nv_add_u32 v20, 0xfffe0000, v20\nv_add_u32 v21, 0xfffe0000, v21\nv_add_u32 v22, 0xfffe0000, v22")
    a(f"""v_lshlrev_b32 v48, 4, v2
    v_add_u32 v48, s43, v48
    v_add_u32 v48, {EP0}, v48
    ds_read_b128 v[64:67], v48
    ds_read_b128 v[68:71], v48 offset:1024
    s_add_u32 s34, s42, {8*2048}
    s_waitcnt lgkmcnt(1)
    buffer_store_dwordx4 v[64:67], v10, s[24:27], s42 offen {sc}
    s_waitcnt lgkmcnt(0)
    buffer_store_dwordx4 v[68:71], v11, s[24:27], s34 offen {sc}
    s_waitcnt vmcnt(0)
    """)
    stamp()
    a(f"""
    s_cmp_eq_u32 s33, 2
    s_cbranch_scc1 L_wait2
    s_barrier
    s_lshl_b32 s34, s33, 4
    s_add_u32 s34, s34, s18
    s_lshl_b32 s34, s34, 2
    v_mov_b32 v48, 0
    v_mov_b32 v49, 1
    s_cmp_lg_u32 s3, 0
    s_cbranch_scc1 L_wait
    s_mov_b64 exec, 1
    buffer_atomic_add v49, v48, s[56:59], s34 offen sc1
    s_mov_b32 s62, 0
    L_poll:
    buffer_load_dword v50, v48, s[56:59], s34 offen sc1
    s_add_u32 s62, s62, 1
    s_cmp_gt_u32 s62, 200000
    s_cbranch_scc1 L_pollx
    s_waitcnt vmcnt(0)
    v_readfirstlane_b32 s35, v50
    s_cmp_lt_u32 s35, 16
    s_cbranch_scc1 L_poll
    L_pollx:
    s_mov_b64 exec, -1
    L_wait:
    s_barrier
    L_wait2:
    """)
    stamp()
    if stamps:
        a("""s_waitcnt lgkmcnt(0)
        s_lshl_b32 s34, s2, 2
        s_add_u32 s34, s34, s3
        s_lshl_b32 s34, s34, 8
        s_lshl_b32 s35, s33, 6
        s_add_u32 s34, s34, s35
        s_add_u32 s34, s34, 0x800000
        s_mov_b32 s96, s28
        s_mov_b32 s97, s29
        s_mov_b32 s98, 0x10000000
        s_mov_b32 s99, 0x20000
        v_mov_b32 v48, 0""")
        for i in range(12):
            a(f"v_mov_b32 v{64+i}, s{64+2*min(i, st[0]-1)}")
        a("""v_mov_b32 v76, s60
        s_mov_b64 exec, 1
        buffer_store_dwordx4 v[64:67], v48, s[96:99], s34 offen
        buffer_store_dwordx4 v[68:71], v48, s[96:99], s34 offen offset:16
        buffer_store_dwordx4 v[72:75], v48, s[96:99], s34 offen offset:32
        buffer_store_dword v76, v48, s[96:99], s34 offen offset:48
        s_waitcnt vmcnt(0)
        s_mov_b64 exec, -1""")
    a(f"""
    s_add_u32 s33, s33, 1
    s_cmp_lt_u32 s33, 3
    s_cbranch_scc1 L_layer
    """)
    if probe:
        if probe == "span":
            a("s_memtime s[92:93]")
        a("""s_memtime s[94:95]
        s_waitcnt lgkmcnt(0)
        s_cmp_lg_u32 s2, 0
        s_cbranch_scc1 L_end
        s_sub_u32 s92, s92, s90
        s_mul_i32 s92, s92, 10
        L_spin:
        s_memtime s[90:91]
        s_waitcnt lgkmcnt(0)
        s_sub_u32 s90, s90, s94
        s_cmp_lt_u32 s90, s92
        s_cbranch_scc1 L_spin
        """)
    a(f"""
    L_end:
    s_endpgm""")
    body = a.text()
    return single_kernel(body, 256, 256, 163840, vgpr=160, sgpr=102, accum=160)

if __name__ == "__main__":
    open("v2_b.s", "w").write(gen("b"))
    open("v2_a.s", "w").write(gen("a"))
    for p in ("span", "first", "l0"):
        open(f"v2_b_p{p}.s", "w").write(gen("b", probe=p))
    open("v2_b_st.s", "w").write(gen("b", stamps=True))
    open("v2_b_st_nosc.s", "w").write(gen("b", sc="", stamps=True))
```
